```python
import torch

def _softmax(x, axis=-1):
    return torch.softmax(x, dim=axis)
def _gelu(x):
    return torch.nn.functional.gelu(x, approximate="tanh")
def _silu(x):
    return torch.nn.functional.silu(x)
def _sigmoid(x):
    return torch.sigmoid(x)
def _layernorm(x, axis=-1, eps=1e-5):
    m = x.mean(dim=axis, keepdim=True)
    v = x.var(dim=axis, keepdim=True, unbiased=False)
    return (x - m) / torch.sqrt(v + eps)
def _scatter_add(tgt, idx, src, axis=0):
    return tgt.clone().index_add_(axis, idx, src)
def _segment_sum(src, seg, n):
    out = torch.zeros((n,) + src.shape[1:], dtype=src.dtype)
    return out.index_add_(0, seg, src)
def _pad(x, pw):
    flat = tuple(v for pair in reversed(pw) for v in pair)
    return torch.nn.functional.pad(x, flat)

kernel_name = 'sequential_preLN__sliding_block_cached__dense_activation_relu__decode'

def setup_inputs():

    _w = (lambda a: (lambda t: t.to(torch.bfloat16) if t.is_floating_point() else t)(torch.as_tensor(a)))
    def _A_setup():
        B, Sq, D = 1, 1, 640
        Hq, Hkv, Sk, Dh = 32, 32, 32768, 192
        assert Hq % Hkv == 0, (Hq, Hkv)
        return {
            "x": _w((lambda *s: torch.randn(*s, dtype=torch.bfloat16) * 0.05)(B, Sq, D)),
            "k_cache": _w((lambda *s: torch.randn(*s, dtype=torch.bfloat16) * 3.2)(B, Hkv, Sk, Dh)),
            "v_cache": _w((lambda *s: torch.randn(*s, dtype=torch.bfloat16) * 0.4)(B, Hkv, Sk, Dh)),
            "wq": _w((lambda *s: torch.randn(*s, dtype=torch.bfloat16) * 3.2)(D, Hq * Dh) * (D ** -0.5)),
            "wo": _w((lambda *s: torch.randn(*s, dtype=torch.bfloat16) * 0.4)(Hq * Dh, D) * ((Hq * Dh) ** -0.5)),
        }
    _A_in = _A_setup()

    def _B_setup():
        B, S, D, Dff = 1, 1, 640, 1536
        return {
            "x": _w((lambda *s: torch.randn(*s, dtype=torch.bfloat16) * 0.05)(B, S, D)),
            "w1": _w((lambda *s: torch.randn(*s, dtype=torch.bfloat16) * 0.05)(D, Dff)),
            "w2": _w((lambda *s: torch.randn(*s, dtype=torch.bfloat16) * 0.05)(Dff, D)),
        }
    _B_in = _B_setup()

    return {
        "A_x": _A_in["x"],
        "A_k_cache": _A_in["k_cache"],
        "A_v_cache": _A_in["v_cache"],
        "A_wq": _A_in["wq"],
        "A_wo": _A_in["wo"],
        "B_x": _B_in["x"],
        "B_w1": _B_in["w1"],
        "B_w2": _B_in["w2"],
    }

def reference(A_x, A_k_cache, A_v_cache, A_wq, A_wo, B_x, B_w1, B_w2):
    def _A_ref(x, k_cache, v_cache, wq, wo):
        B, Sq, D = x.shape
        Hq, Dh = 32, 192
        Hkv, Sk = k_cache.shape[1], k_cache.shape[2]
        W = min(4096, max(256, Sk // 4))
        rep = Hq // Hkv
        q = (lambda x, *d: x.permute(*d))((x @ wq).reshape(B, Sq, Hq, Dh), 0, 2, 1, 3)
        k = (lambda x, n, axis: torch.repeat_interleave(x, n, dim=axis))(k_cache[:, :, Sk - W:, :], rep, axis=1)
        v = (lambda x, n, axis: torch.repeat_interleave(x, n, dim=axis))(v_cache[:, :, Sk - W:, :], rep, axis=1)
        scores = torch.einsum("bhqd,bhkd->bhqk", q, k) * (Dh ** -0.5)
        p = _softmax(scores, axis=-1)
        o = torch.einsum("bhqk,bhkd->bhqd", p, v)
        return (lambda x, *d: x.permute(*d))(o, 0, 2, 1, 3).reshape(B, Sq, Hq * Dh) @ wo

    def _B_ref(x, w1, w2):
        h = torch.einsum("bsd,df->bsf", x, w1)
        zero = torch.zeros_like(h)
        h = torch.maximum(h, zero)
        return torch.einsum("bsf,fd->bsd", h, w2)

    x = A_x
    h = x + _A_ref(_layernorm(x, axis=-1), A_k_cache, A_v_cache, A_wq, A_wo)
    h2 = h + _B_ref(_layernorm(h, axis=-1), B_w1, B_w2)
    return h2
```

```python
import re
KN = "sequential_preLN__sliding_block_cached__dense_activation_relu__decode"

def regs_of(op):
    op = op.strip()
    op = re.sub(r"^-", "", op)
    m = re.match(r"^abs\((.*)\)$", op)
    if m: op = m.group(1)
    m = re.match(r"^\|(.*)\|$", op)
    if m: op = m.group(1)
    m = re.match(r"^([vsa])\[(\d+):(\d+)\]$", op)
    if m: return {(m.group(1), r) for r in range(int(m.group(2)), int(m.group(3)) + 1)}
    m = re.match(r"^([vsa])(\d+)$", op)
    if m: return {(m.group(1), int(m.group(2)))}
    if op in ("vcc", "vcc_lo", "vcc_hi"): return {("s", "vcc")}
    if op == "m0": return {("s", "m0")}
    if op in ("exec", "exec_lo", "exec_hi"): return {("s", "exec")}
    return set()

TRANS = ("v_exp_", "v_log_", "v_rcp_", "v_rsq_", "v_sqrt_", "v_sin_", "v_cos_")

class Ins:
    def __init__(self, text):
        self.text = text
        t = text.split(";")[0].strip()
        self.is_label = t.endswith(":") or t.startswith(".") or t == ""
        self.mn = ""; self.dst = set(); self.src = set(); self.cls = "none"; self.states = 0
        self.srcC = set(); self.srcAB = set(); self.dpp = False; self.data = set()
        if self.is_label: return
        parts = t.split(None, 1)
        mn = self.mn = parts[0]
        rest = parts[1] if len(parts) > 1 else ""
        raw = [o.strip() for o in re.split(r",(?![^\[]*\])", rest)] if rest else []
        ops = []
        for o in raw:
            ops.append(o.split()[0] if o.split() else o)
        self.states = 1
        R = [regs_of(o) for o in ops]
        U = lambda xs: set().union(*xs) if xs else set()
        if mn == "s_nop":
            self.cls = "salu"; self.states = int(ops[0], 0) + 1
        elif mn.startswith("v_mfma"):
            self.cls = "mfma"; self.dst = R[0]; self.srcAB = R[1] | R[2]; self.srcC = R[3]; self.src = U(R[1:])
            self.sg = "_f32" == mn[-4:] and "bf16" not in mn
        elif mn.startswith("v_"):
            self.cls = "valu"
            self.dpp = ("_dpp" in mn) or ("quad_perm" in rest) or ("row_" in rest)
            if mn.startswith("v_permlane"):
                self.dst = R[0] | R[1]; self.src = R[0] | R[1]
            elif mn.startswith(("v_add_co", "v_sub_co", "v_addc_co", "v_subb_co")):
                self.dst = R[0] | R[1]; self.src = U(R[2:])
            else:
                self.dst = R[0]; self.src = U(R[1:])
                if mn.startswith(("v_fmac", "v_pk_fmac", "v_dot2c")) or (self.dpp): self.src |= R[0]
                if mn.startswith("v_cndmask") and len(ops) == 3: self.src |= {("s", "vcc")}
        elif mn.startswith(("global_", "buffer_")):
            self.cls = "vmem"
            if "load_lds" in mn or " lds" in rest:
                self.src = U(R) | {("s", "m0")}; self.ldsdma = True
            elif "load" in mn:
                self.dst = R[0]; self.src = U(R[1:])
            elif "atomic" in mn and "sc0" in rest:
                self.dst = R[0]; self.src = U(R[1:])
            else:
                self.src = U(R)
                if mn.endswith(("x3", "x4")):
                    self.data = R[1] if mn.startswith("global_") else R[0]
        elif mn.startswith("ds_"):
            self.cls = "ds"
            if mn.startswith(("ds_read", "ds_bpermute", "ds_permute", "ds_swizzle")) or "_rtn" in mn:
                self.dst = R[0]; self.src = U(R[1:])
            else:
                self.src = U(R)
        elif mn.startswith("s_"):
            self.cls = "salu"
            if mn.startswith(("s_cmp", "s_cbranch", "s_branch", "s_waitcnt", "s_barrier", "s_sleep", "s_setprio", "s_endpgm", "s_bitcmp")):
                self.src = U(R)
            else:
                self.dst = R[0] if R else set(); self.src = U(R[1:])
                if "saveexec" in mn: self.dst |= {("s", "exec")}
        self.trans = mn.startswith(TRANS)

def vonly(s): return {r for r in s if r[0] in "va"}
def sonly(s): return {r for r in s if r[0] == "s"}

def need(p, c):
    n = 0
    if p.cls == "valu":
        vd = vonly(p.dst); sd = sonly(p.dst)
        if c.cls == "valu":
            if c.dpp and vd & c.src: n = max(n, 2)
            if c.mn.startswith("v_permlane") and vd & c.src: n = max(n, 2)
            if c.mn.startswith(("v_readfirstlane", "v_readlane")) and vd & c.src: n = max(n, 1)
            if sd & c.src: n = max(n, 2)
            if ("s", "exec") in sd: n = max(n, 5)
        if c.cls == "mfma":
            if vd & c.src: n = max(n, 2)
            if ("s", "exec") in sd: n = max(n, 4)
        if p.trans and vd & c.src: n = max(n, 1)
        if c.cls == "vmem" and sd & c.src: n = max(n, 5)
        if "sdwa" in p.text and vd & (c.src | c.dst): n = max(n, 1)
    if p.cls == "mfma":
        big = 10 if p.sg else 8
        if c.cls == "mfma":
            if p.dst & c.srcAB: n = max(n, big)
            if p.dst & c.srcC:
                if p.dst == c.srcC and p.mn == c.mn: n = max(n, 2 if "16x16x16" in p.mn else 0)
                else: n = max(n, 8)
            elif p.dst & c.dst: n = max(n, 8)
        elif c.cls in ("valu", "vmem", "ds"):
            if p.dst & (c.src | c.dst): n = max(n, big)
            if c.cls == "valu" and p.srcC & c.dst: n = max(n, 3)
    if p.cls == "salu" and ("s", "m0") in p.dst and c.cls == "vmem" and ("s", "m0") in c.src: n = max(n, 1)
    if p.cls == "vmem" and p.data and c.cls in ("valu", "mfma", "ds", "vmem") and p.data & c.dst: n = max(n, 2)
    return n

class Asm:
    def __init__(self):
        self.l = []
    def __call__(self, s):
        for x in s.strip("\n").split("\n"):
            if x.strip(): self.l.append(x if x.rstrip().endswith(":") or x.lstrip().startswith((".", ";")) else "    " + x.strip())
    def padded(self):
        out = []
        npad = 0
        for t in self.l:
            c = Ins(t)
            if not c.is_label:
                dist = 0; req = 0
                for p in reversed(out):
                    if p.is_label: continue
                    if p.mn in ("s_branch", "s_endpgm"): break
                    r = need(p, c) - dist
                    req = max(req, r)
                    dist += p.states
                    if dist >= 12: break
                while req > 0:
                    k = min(req, 16)
                    out.append(Ins(f"    s_nop {k-1}")); req -= k; npad += 1
            out.append(c)
        self.npad = npad
        return "\n".join(i.text for i in out) + "\n"

HEAD_COMMENT = """; Kernarg layout (88 bytes, pointers only, base s[0:1]):
;   0 A_x  8 A_k_cache  16 A_v_cache  24 A_wq  32 A_wo  40 B_x  48 B_w1  56 B_w2  64 d_out  72 d_debug  80 d_ws
"""
def header(grid, block, lds):
    return HEAD_COMMENT + f"""; @launch grid=({grid},1,1) block=({block},1,1) lds={lds}
.amdgcn_target "amdgcn-amd-amdhsa--gfx950"
.text
.globl {KN}_kernel
.p2align 8
.type {KN}_kernel,@function
{KN}_kernel:
"""
def footer(vgpr=256, sgpr=102, accum=256):
    return f""".section .rodata,"a"
.p2align 6
.amdhsa_kernel {KN}_kernel
  .amdhsa_next_free_vgpr {vgpr}
  .amdhsa_next_free_sgpr {sgpr}
  .amdhsa_accum_offset {accum}
  .amdhsa_group_segment_fixed_size 0
  .amdhsa_kernarg_size 88
  .amdhsa_user_sgpr_count 2
  .amdhsa_user_sgpr_kernarg_segment_ptr 1
  .amdhsa_system_sgpr_workgroup_id_x 1
  .amdhsa_float_denorm_mode_32 3
.end_amdhsa_kernel
"""
```

```python
import sys
from asmlib import *

WS_EPOCH = 0x0
WS_FL = 0x1000
WS_QP = 0x10000
WS_OP = 0x80000
WS_YP = 0xB0000
WS_ZP = 0xC0000
L_QRDY, L_ISS, L_DONE, L_OK, L_PUB = 0, 4, 8, 12, 16
L_ML, L_ST, L_ZERO = 64, 128, 192
L_Q, L_G, L_S, L_H = 256, 640, 960, 1280
L_XN, L_Y, L_QT = 2560, 2560, 5120
L_O, L_W = 8192, 20480
L_W1, L_W2 = L_W, L_W + 20480
LDS_BYTES = L_W + 49152
LOG2E = "0x3fb8aa3b"
SPIN = 1 << 17
DPPF = "row_mask:0xf bank_mask:0xf"

def gen(name, stamps=False, opts=None):
    o = dict(fast=True, sleep_y=0, sleep_o=0, sleep_z=0, codepf=True, N=3, N0=6, NC=4, chunks=4, dma="issued", ND=20)
    o.update(opts or {})
    A = A0 = Asm()
    A(header(256, 512, LDS_BYTES))
    def stamp(k):
        if stamps: A(f"s_memrealtime s[{60+2*k}:{61+2*k}]")
    def wave_red(op, v, sdst, full=True, T=None):
        A = T if T is not None else A0
        if full:
            for r in (1, 2, 4):
                A(f"v_{op}_f32_dpp {v}, {v}, {v} row_ror:{r} {DPPF}")
        A(f"v_{op}_f32_dpp {v}, {v}, {v} row_ror:8 {DPPF}")
        A(f"v_{op}_f32_dpp {v}, {v}, {v} row_bcast:15 row_mask:0xa bank_mask:0xf")
        A(f"v_{op}_f32_dpp {v}, {v}, {v} row_bcast:31 row_mask:0xc bank_mask:0xf")
        A(f"v_readlane_b32 {sdst}, {v}, 63")
    def masks():
        A("""
        v_and_b32 v24, 1, v0
        v_lshlrev_b32 v24, 4, v24
        v_mov_b32 v25, 0xffff
        v_lshlrev_b32 v24, v24, v25
        v_bfe_u32 v25, v0, 1, 2
        """)
        for r in range(4):
            A(f"v_cmp_eq_u32 vcc, {r}, v25")
            A(f"v_cndmask_b32 v{12+r}, 0, v24, vcc")

    if stamps:
        for k in range(16): A(f"s_mov_b32 s{60+2*k}, 0")
    stamp(0)
    A(f"""
    s_load_dwordx16 s[4:19], s[0:1], 0
    s_load_dwordx4 s[20:23], s[0:1], 64
    s_load_dwordx2 s[24:25], s[0:1], 80
    s_cmp_ge_u32 s2, 256
    s_cbranch_scc1 L_end
    v_lshrrev_b32 v1, 6, v0
    v_and_b32 v0, 63, v0
    v_readfirstlane_b32 s26, v1
    s_and_b32 s27, s2, 7
    s_lshr_b32 s28, s2, 3
    s_lshr_b32 s29, s28, 3
    s_lshl2_add_u32 s29, s27, s29
    s_and_b32 s30, s28, 7
    v_and_b32 v2, 15, v0
    v_lshrrev_b32 v3, 4, v0
    s_mul_i32 s34, s29, 12582912
    s_mul_i32 s35, s30, 196608
    s_add_u32 s34, s34, s35
    s_mul_i32 s35, s26, 24576
    s_add_u32 s34, s34, s35
    s_add_u32 s34, s34, {11010048 + 3072}
    v_lshrrev_b32 v24, 2, v2
    v_mul_u32_u24 v24, 768, v24
    v_and_b32 v25, 3, v2
    v_lshl_add_u32 v24, v25, 4, v24
    v_lshl_add_u32 v24, v3, 6, v24
    v_add_u32 v4, s34, v24
    v_mul_u32_u24 v24, 768, v3
    v_lshl_add_u32 v24, v2, 4, v24
    v_add_u32 v8, s34, v24
    v_add_u32 v5, 9216, v4
    v_add_u32 v6, 18432, v4
    v_add_u32 v9, 9216, v8
    v_add_u32 v10, 18432, v8
    s_mul_i32 s31, s27, 12
    s_add_u32 s31, s31, s28
    s_sub_u32 s31, s31, 20
    s_cmp_lt_u32 s28, 20
    s_cselect_b32 s31, s28, s31
    s_mov_b32 s40, 0x00ff00ff
    s_mov_b32 s41, 0x00ff00ff
    s_mov_b32 s42, 0x00ff00ff
    s_mov_b32 s43, 0xff00ff00
    s_mov_b32 s44, 0xff00ff00
    s_mov_b32 s45, 0xff00ff00
    s_cmp_eq_u32 s26, 0
    s_cbranch_scc1 L_control
    s_waitcnt lgkmcnt(0)
    s_barrier
L_data:
    """)
    def kvload(n):
        vb, sb, dst = (4, 6, 32) if n < 24 else (8, 8, 128)
        g, m = divmod(n % 24, 3)
        d = dst + (g * 3 + m) * 4
        return f"global_load_dwordx4 v[{d}:{d+3}], v{vb + g//3}, s[{sb}:{sb+1}] offset:{(g%3-1)*3072 + m*256} nt"
    def pvmfma(n):
        a, m = divmod(n, 3)
        k = 128 + n * 4
        d = 64 + 4 * m
        c = "0" if a == 0 else f"v[{d}:{d+3}]"
        return f"v_mfma_f32_16x16x32_bf16 v[{d}:{d+3}], v[{k}:{k+3}], v[{32+4*a}:{35+4*a}], {c}"
    def dreg(a): return 236 if a == 0 else 32 + (a - 1) * 12
    def qk_softmax():
        B = Asm()
        for a in range(8):
            d = dreg(a)
            for m in range(3):
                k = 32 + (a * 3 + m) * 4
                c = "0" if m == 0 else f"v[{d}:{d+3}]"
                B(f"v_mfma_f32_16x16x32_bf16 v[{d}:{d+3}], v[{k}:{k+3}], v[{224+4*m}:{227+4*m}], {c}")
        for a in range(8):
            B(f"v_mov_b32_dpp v{16+a}, v{dreg(a)} quad_perm:[0,0,0,0] {DPPF}")
        for t in (1, 2, 3):
            for a in range(8):
                B(f"v_add_f32_dpp v{16+a}, v{dreg(a)+t}, v{16+a} quad_perm:[{t},{t},{t},{t}] {DPPF}")
        B("s_mov_b32 s34, 0x3d93cd3a")
        B("s_mov_b32 s35, 0xffff0000")
        for rnd in range(2):
            for p in range(4): B(f"v_cvt_pk_bf16_f32 v{24+p}, v{16+2*p}, v{17+2*p}")
            for p in range(4):
                B(f"v_lshlrev_b32 v{16+2*p}, 16, v{24+p}")
                B(f"v_and_b32 v{17+2*p}, s35, v{24+p}")
            if rnd == 0:
                for a in range(8): B(f"v_mul_f32 v{16+a}, s34, v{16+a}")
        B("""
        v_max3_f32 v24, v16, v17, v18
        v_max3_f32 v25, v19, v20, v21
        v_max3_f32 v24, v24, v22, v23
        v_max_f32 v24, v24, v25
        """)
        wave_red("max", "v24", "s38", full=False, T=B)
        for a in range(8): B(f"v_subrev_f32 v{16+a}, s38, v{16+a}")
        for a in range(8): B(f"v_mul_f32 v{16+a}, {LOG2E}, v{16+a}")
        for a in range(8): B(f"v_exp_f32 v{16+a}, v{16+a}")
        for a in range(8): B(f"v_cvt_pk_bf16_f32 v{240+a}, v{16+a}, v{16+a}")
        B("""
        v_add_f32 v24, v16, v17
        v_add_f32 v25, v18, v19
        v_add_f32 v26, v20, v21
        v_add_f32 v27, v22, v23
        v_add_f32 v24, v24, v25
        v_add_f32 v26, v26, v27
        v_add_f32 v24, v24, v26
        """)
        wave_red("add", "v24", "s39", full=False, T=B)
        for a in range(8):
            for r in range(4): B(f"v_and_b32 v{32+4*a+r}, v{12+r}, v{240+a}")
        return B.l
    def data_path(N, NC, sfx, ctl):
        stamp(1)
        n = 0
        while n < 24 + N:
            if n >= N: A(f"s_waitcnt vmcnt({N-1})")
            A(kvload(n))
            n += 1
            if n == N:
                A("v_mov_b32 v11, 0")
                masks()
                A(f"""
                v_and_b32 v28, 3, v2
                v_lshl_add_u32 v28, v3, 2, v28
                v_lshlrev_b32 v28, 4, v28
                v_add_u32 v28, {L_Q}, v28
                v_mov_b32 v24, {L_ZERO}
                v_add_u32 v29, 256, v28
                v_subrev_u32 v30, 128, v28
                v_cmp_gt_u32 vcc, 32, v0
                v_cndmask_b32 v29, v30, v29, vcc
                v_add_u32 v30, 128, v28
                v_cndmask_b32 v28, v24, v28, s[40:41]
                v_cndmask_b32 v29, v24, v29, s[42:43]
                v_cndmask_b32 v30, v24, v30, s[44:45]
                """)
        for _ in range(NC - N):
            A(kvload(n)); n += 1
        stamp(2)
        A(f"""
        s_mov_b32 s46, 0
L_qspin{sfx}:
        ds_read_b32 v27, v11 offset:{L_QRDY}
        ds_read_b128 v[224:227], v28
        ds_read_b128 v[228:231], v29
        ds_read_b128 v[232:235], v30
        s_add_u32 s46, s46, 1
        s_waitcnt lgkmcnt(0)
        v_readfirstlane_b32 s37, v27
        s_cmp_lg_u32 s37, 0
        s_cbranch_scc1 L_qgot{sfx}
        s_sleep 2
        s_cmp_lt_u32 s46, {SPIN*8}
        s_cbranch_scc1 L_qspin{sfx}
L_qgot{sfx}:
        """)
        stamp(3)
        body = qk_softmax()
        cost = [16 if "mfma" in x else 5 for x in body]
        tot = sum(cost); C = o["chunks"]; acc = 0; nxt = 1
        for x, c in zip(body, cost):
            A(x); acc += c
            if nxt < C and acc >= tot * nxt / C:
                A(f"s_waitcnt vmcnt({NC-1})"); A(kvload(n)); n += 1; nxt += 1
        A(f"""
        v_mov_b32 v24, s38
        v_mov_b32 v25, s39
        s_lshl_b32 s34, s26, 3
        v_mov_b32 v26, s34
        s_mov_b64 exec, 1
        ds_write_b64 v26, v[24:25] offset:{L_ML}
        s_mov_b64 exec, -1
        s_mul_i32 s34, s26, 1536
        v_and_b32 v27, 7, v0
        v_lshlrev_b32 v27, 4, v27
        v_lshl_add_u32 v27, v3, 7, v27
        v_add_u32 v27, s34, v27
        v_mov_b32 v24, 1
        """)
        stamp(4)
        pv = 0
        while n < 48:
            A(f"s_waitcnt vmcnt({N-1})")
            A(kvload(n)); n += 1
            while pv <= n - 1 - 24 - N:
                A(pvmfma(pv)); pv += 1
        if not ctl:
            A(f"""
            s_mov_b64 exec, 1
            ds_add_u32 v11, v24 offset:{L_ISS}
            s_mov_b64 exec, -1
            s_mov_b32 s46, 0
L_kspin:
            ds_read_b32 v25, v11 offset:{L_OK}
            s_add_u32 s46, s46, 1
            s_waitcnt lgkmcnt(0)
            v_readfirstlane_b32 s37, v25
            s_cmp_lg_u32 s37, 0
            s_cbranch_scc1 L_kgot
            s_sleep 1
            s_cmp_lt_u32 s46, {SPIN*8}
            s_cbranch_scc1 L_kspin
L_kgot:
            """)
            red_setup()
        while pv < 24:
            A(f"s_waitcnt vmcnt({23-pv})")
            A(pvmfma(pv)); pv += 1
        stamp(5)
        for m in range(3):
            A(f"s_mov_b64 exec, s[{40+2*m}:{41+2*m}]")
            A(f"ds_write_b128 v27, v[{64+4*m}:{67+4*m}] offset:{L_O + 512*m}")
        A(f"""
        s_mov_b64 exec, 1
        ds_add_u32 v11, v24 offset:{L_DONE}
        s_mov_b64 exec, -1
        """)
    def red_setup():
        A(f"""
        s_sub_u32 s52, s26, 1
        s_lshl_b32 s35, s52, 8
        v_lshrrev_b32 v4, 5, v0
        v_lshlrev_b32 v4, 7, v4
        v_and_b32 v5, 7, v0
        v_lshl_add_u32 v4, v5, 4, v4
        v_bfe_u32 v6, v0, 3, 2
        v_lshl_add_u32 v4, v6, 2, v4
        v_add_u32 v4, s35, v4
        v_add_u32 v4, {L_O}, v4
        v_lshlrev_b32 v5, 3, v5
        s_lshl_b32 s35, s29, 3
        s_add_u32 s35, s35, s30
        s_lshl_b32 s35, s35, 9
        s_add_u32 s35, s35, {WS_OP}
        s_lshl_b32 s47, s52, 7
        s_add_u32 s47, s47, s35
        v_lshlrev_b32 v6, 1, v0
        v_add_u32 v6, s47, v6
        v_mov_b32 v7, s35
        s_mov_b32 s48, 0x55555555
        s_mov_b32 s49, 0x55555555
        s_cmp_eq_u32 s52, 0
        s_cselect_b32 s50, 1, 0
        s_mov_b32 s51, 0
        s_mov_b32 s46, 0
        """)
    data_path(o["N"], o["NC"], "", False)
    A("""
    s_cmp_ge_u32 s26, 4
    s_cbranch_scc1 L_role
    """)
    A(f"""
L_dspin:
    ds_read_b32 v27, v11 offset:{L_DONE}
    ds_read_b64 v[28:29], v5 offset:{L_ML}
    """)
    for k in range(8):
        A(f"ds_read2st64_b32 v[{80+2*k}:{81+2*k}], v4 offset0:{6*k} offset1:{6*k+3}")
    A(f"""
    s_add_u32 s46, s46, 1
    s_waitcnt lgkmcnt(0)
    v_readfirstlane_b32 s35, v27
    s_cmp_eq_u32 s35, 8
    s_cbranch_scc1 L_dgot
    s_cmp_lt_u32 s46, {SPIN*8}
    s_cbranch_scc1 L_dspin
L_dgot:
    v_max_f32_dpp v16, v28, v28 row_ror:1 {DPPF}
    """)
    for k in range(4): A(f"v_add_f32 v{80+2*k}, v{80+2*k}, v{81+2*k}")
    A(f"v_max_f32_dpp v16, v16, v16 row_ror:2 {DPPF}")
    for k in range(4, 8): A(f"v_add_f32 v{80+2*k}, v{80+2*k}, v{81+2*k}")
    A(f"""
    v_max_f32_dpp v16, v16, v16 row_ror:4 {DPPF}
    v_sub_f32 v18, v28, v16
    v_mul_f32 v18, {LOG2E}, v18
    v_exp_f32 v18, v18
    v_mul_f32 v17, v18, v29
    v_mul_f32_dpp v19, v18, v80 row_newbcast:0 {DPPF}
    v_mul_f32_dpp v20, v18, v82 row_newbcast:1 {DPPF}
    v_add_f32_dpp v17, v17, v17 row_ror:1 {DPPF}
    v_fmac_f32_dpp v19, v18, v84 row_newbcast:2 {DPPF}
    v_fmac_f32_dpp v20, v18, v86 row_newbcast:3 {DPPF}
    v_add_f32_dpp v17, v17, v17 row_ror:2 {DPPF}
    v_fmac_f32_dpp v19, v18, v88 row_newbcast:4 {DPPF}
    v_fmac_f32_dpp v20, v18, v90 row_newbcast:5 {DPPF}
    v_add_f32_dpp v17, v17, v17 row_ror:4 {DPPF}
    v_fmac_f32_dpp v19, v18, v92 row_newbcast:6 {DPPF}
    v_fmac_f32_dpp v20, v18, v94 row_newbcast:7 {DPPF}
    v_add_f32 v19, v19, v20
    v_mov_b32_dpp v20, v19 quad_perm:[1,1,3,3] {DPPF}
    v_cvt_pk_bf16_f32 v19, v19, v20
    s_cmp_eq_u32 s37, 2
    s_cbranch_scc0 L_pub_slow
    s_mov_b64 exec, s[48:49]
    global_store_dword v6, v19, s[24:25]
    s_mov_b64 exec, s[50:51]
    global_store_dwordx2 v7, v[16:17], s[24:25] offset:384
L_pub_done:
    s_mov_b64 exec, 1
    ds_add_u32 v11, v24 offset:{L_PUB}
    s_mov_b64 exec, -1
L_role:
    """)
    stamp(6)
    A(f"""
    s_cmp_lt_u32 s28, 20
    s_cbranch_scc0 L_mlp
    """)
    A(f"""
    s_lshr_b32 s34, s26, 1
    s_lshl2_add_u32 s34, s27, s34
    s_lshl_b32 s34, s34, 12
    s_add_u32 s34, s34, {WS_OP}
    s_and_b32 s35, s26, 1
    s_mul_i32 s35, s35, 192
    s_add_u32 s35, s35, s34
    v_and_b32 v24, 7, v0
    v_lshlrev_b32 v24, 9, v24
    v_lshl_add_u32 v24, v3, 4, v24
    v_add_u32 v24, s35, v24
    v_lshl_add_u32 v25, v3, 2, v2
    v_and_b32 v25, 7, v25
    v_lshlrev_b32 v25, 9, v25
    v_add_u32 v25, s34, v25
    global_load_dwordx4 v[32:35], v24, s[24:25] sc1
    global_load_dwordx4 v[36:39], v24, s[24:25] offset:64 sc1
    global_load_dwordx4 v[40:43], v24, s[24:25] offset:128 sc1
    global_load_dwordx2 v[44:45], v25, s[24:25] offset:384 sc1
    s_mul_i32 s34, s26, {96*64}
    s_add_u32 s34, s34, {L_W}
    v_lshrrev_b32 v26, 2, v2
    v_lshl_add_u32 v26, v3, 3, v26
    v_lshlrev_b32 v26, 6, v26
    v_and_b32 v27, 3, v0
    v_lshl_add_u32 v26, v27, 3, v26
    v_add_u32 v26, s34, v26
    v_and_b32 v27, 1, v3
    v_lshlrev_b32 v27, 5, v27
    v_xor_b32 v28, 32, v27
    v_add_u32 v27, v26, v27
    v_add_u32 v28, v26, v28
    s_lshl_b32 s34, s26, 8
    v_lshl_add_u32 v29, v0, 2, s34
    s_waitcnt vmcnt(0)
    s_barrier
    """)
    stamp(7)
    for t in range(2):
        for s in range(3):
            for u in range(2):
                d = 48 + (t * 3 + s) * 4 + 2 * u
                A(f"ds_read_b64_tr_b16 v[{d}:{d+1}], v{27+t} offset:{s*2048+u*256}")
    A(f"""
    s_mov_b32 s46, 0
    s_branch L_ochk
L_opoll:
    """)
    if o["sleep_o"]: A(f"s_sleep {o['sleep_o']}")
    A(f"""
    global_load_dwordx4 v[32:35], v24, s[24:25] sc1
    global_load_dwordx4 v[36:39], v24, s[24:25] offset:64 sc1
    global_load_dwordx4 v[40:43], v24, s[24:25] offset:128 sc1
    global_load_dwordx2 v[44:45], v25, s[24:25] offset:384 sc1
    s_add_u32 s46, s46, 1
    s_cmp_ge_u32 s46, {SPIN}
    s_waitcnt vmcnt(0)
    s_cbranch_scc1 L_ogot
L_ochk:
    v_max3_u32 v16, v32, v33, v34
    v_max3_u32 v17, v35, v36, v37
    v_max3_u32 v16, v16, v38, v39
    v_max3_u32 v17, v17, v40, v41
    v_max3_u32 v16, v16, v42, v43
    v_max3_u32 v17, v17, v44, v45
    v_max_u32 v16, v16, v17
    v_cmp_eq_u32 vcc, -1, v16
    s_mov_b64 exec, vcc
    s_cbranch_vccnz L_opoll
L_ogot:
    s_mov_b64 exec, -1
    s_waitcnt lgkmcnt(0)
    """)
    stamp(8)
    A(f"""
    v_mfma_f32_16x16x32_bf16 v[72:75], v[32:35], v[48:51], 0
    v_max_f32_dpp v16, v44, v44 row_ror:1 {DPPF}
    v_mfma_f32_16x16x32_bf16 v[76:79], v[32:35], v[60:63], 0
    v_max_f32_dpp v16, v16, v16 row_ror:2 {DPPF}
    v_mfma_f32_16x16x32_bf16 v[72:75], v[36:39], v[52:55], v[72:75]
    v_max_f32_dpp v16, v16, v16 row_ror:4 {DPPF}
    v_mfma_f32_16x16x32_bf16 v[76:79], v[36:39], v[64:67], v[76:79]
    v_sub_f32 v16, v44, v16
    v_mul_f32 v16, {LOG2E}, v16
    v_mfma_f32_16x16x32_bf16 v[72:75], v[40:43], v[56:59], v[72:75]
    v_exp_f32 v16, v16
    v_mfma_f32_16x16x32_bf16 v[76:79], v[40:43], v[68:71], v[76:79]
    v_mul_f32 v17, v16, v45
    v_add_f32_dpp v17, v17, v17 row_ror:1 {DPPF}
    v_add_f32_dpp v17, v17, v17 row_ror:2 {DPPF}
    v_add_f32_dpp v17, v17, v17 row_ror:4 {DPPF}
    v_rcp_f32 v17, v17
    v_mul_f32_dpp v18, v16, v72 row_newbcast:0 {DPPF}
    v_mul_f32_dpp v19, v16, v76 row_newbcast:0 {DPPF}
    v_cmp_gt_u32 vcc, 32, v0
    v_fmac_f32_dpp v18, v16, v73 row_newbcast:1 {DPPF}
    v_fmac_f32_dpp v19, v16, v77 row_newbcast:1 {DPPF}
    v_fmac_f32_dpp v18, v16, v74 row_newbcast:2 {DPPF}
    v_fmac_f32_dpp v19, v16, v78 row_newbcast:2 {DPPF}
    v_fmac_f32_dpp v18, v16, v75 row_newbcast:3 {DPPF}
    v_fmac_f32_dpp v19, v16, v79 row_newbcast:3 {DPPF}
    v_cndmask_b32 v18, v19, v18, vcc
    v_mul_f32 v18, v18, v17
    ds_write_b32 v29, v18 offset:{L_Y}
    v_lshrrev_b32 v24, 5, v0
    v_lshlrev_b32 v24, 10, v24
    v_and_b32 v25, 16, v0
    v_lshl_add_u32 v24, v25, 3, v24
    v_lshl_add_u32 v24, v2, 2, v24
    v_add_u32 v24, {L_Y}, v24
    s_mul_i32 s34, s27, 2560
    s_lshl_b32 s35, s31, 7
    s_add_u32 s34, s34, s35
    s_add_u32 s34, s34, {WS_YP}
    v_lshl_add_u32 v25, v0, 2, s34
    s_waitcnt lgkmcnt(0)
    s_barrier
    s_cmp_lg_u32 s26, 0
    s_cbranch_scc1 L_fin
    """)
    for k in range(4):
        A(f"ds_read2_b32 v[{32+2*k}:{33+2*k}], v24 offset0:{64*k} offset1:{64*k+16}")
    A(f"""
    s_waitcnt lgkmcnt(0)
    v_add_f32 v32, v32, v33
    v_add_f32 v34, v34, v35
    v_add_f32 v36, v36, v37
    v_add_f32 v38, v38, v39
    v_add_f32 v32, v32, v34
    v_add_f32 v36, v36, v38
    v_add_f32 v32, v32, v36
    v_mov_b32 v33, v32
    v_permlane32_swap_b32 v32, v33
    v_add_f32 v32, v32, v33
    s_mov_b32 exec_hi, 0
    global_store_dword v25, v32, s[24:25] sc1
    s_mov_b64 exec, -1
    """)
    stamp(9)
    A("s_branch L_fin")
    A(f"""
L_mlp:
    s_lshl_b32 s34, s26, 8
    v_lshl_add_u32 v24, v0, 2, s34
    s_cmp_lt_u32 s26, 5
    s_cbranch_scc0 L_mlp_nox
    global_load_dword v31, v24, s[4:5]
L_mlp_nox:
    v_lshlrev_b32 v25, 1, v24
    v_add_u32 v25, {WS_YP + 2560}, v25
    v_add_u32 v26, {2560*3}, v25
    v_add_u32 v23, {2560*6}, v25
    v_lshrrev_b32 v27, 1, v3
    v_lshlrev_b32 v27, 9, v27
    v_and_b32 v28, 1, v3
    v_lshl_add_u32 v27, v28, 7, v27
    v_lshl_add_u32 v27, v2, 3, v27
    s_lshl_b32 s34, s26, 12
    s_add_u32 s34, s34, {L_W1}
    v_add_u32 v27, s34, v27
    v_lshrrev_b32 v29, 2, v2
    v_lshl_add_u32 v29, v3, 2, v29
    v_lshlrev_b32 v29, 6, v29
    v_and_b32 v30, 3, v0
    v_lshl_add_u32 v29, v30, 3, v29
    v_add_u32 v29, {L_W2}, v29
    s_mul_i32 s35, s26, 5
    """)
    for k in range(5):
        A(f"""
        s_add_u32 s47, s35, {k}
        s_and_b32 s48, s47, 1
        s_lshr_b32 s47, s47, 1
        s_lshl_b32 s47, s47, 10
        v_xor_b32 v30, s48, v28
        v_lshl_add_u32 v30, v30, 5, v29
        v_add_u32 v{16+k}, s47, v30
        """)
    A(f"""
    v_mov_b32 v108, 0x3f803f80
    v_mov_b32 v109, 0x3f803f80
    v_mov_b32 v110, 0x3f803f80
    v_mov_b32 v111, 0x3f803f80
    s_lshl_b32 s34, s26, 6
    v_lshl_add_u32 v21, v3, 4, s34
    v_lshlrev_b32 v22, 4, v3
    s_mov_b32 s48, 0x00010001
    s_mov_b32 s49, 0x00010001
    s_waitcnt vmcnt(0)
    s_barrier
    """)
    stamp(7)
    for k in range(5):
        A(f"ds_read_b64_tr_b16 v[{96+2*k}:{97+2*k}], v{16+k}")
    A("""
    s_cmp_lt_u32 s26, 5
    s_cbranch_scc0 L_mlp_nos
    """)
    for s in range(4):
        for u in range(2):
            d = 80 + 4 * s + 2 * u
            A(f"ds_read_b64_tr_b16 v[{d}:{d+1}], v27 offset:{s*1024+u*256}")
    A("s_waitcnt lgkmcnt(0)")
    for s in range(4):
        c = "0" if s == 0 else "v[112:115]"
        A(f"v_mfma_f32_16x16x32_bf16 v[112:115], v[{80+4*s}:{83+4*s}], v[108:111], {c}")
    A(f"""
    s_mov_b64 exec, s[48:49]
    ds_write_b128 v21, v[112:115] offset:{L_S}
    s_mov_b64 exec, -1
L_mlp_nos:
    s_waitcnt lgkmcnt(0)
    s_barrier
    """)
    for w in range(5):
        A(f"ds_read_b128 v[{48+4*w}:{51+4*w}], v22 offset:{L_S + 64*w}")
    for k in range(5):
        A(f"v_cmp_eq_u32 s[{50+2*k}:{51+2*k}], {k}, v2")
    A(f"""
    s_mul_i32 s34, s31, 2560
    s_mul_i32 s35, s26, 320
    s_add_u32 s34, s34, s35
    s_add_u32 s34, s34, {WS_ZP}
    v_lshlrev_b32 v20, 6, v2
    v_lshl_add_u32 v20, v3, 4, v20
    v_add_u32 v20, s34, v20
    s_lshl_b32 s34, s26, 8
    v_lshl_add_u32 v19, v3, 4, s34
    s_waitcnt lgkmcnt(0)
    """)
    for r in range(4):
        A(f"v_add_f32 v{116+r}, v{48+r}, v{52+r}")
        A(f"v_add_f32 v{56+r}, v{56+r}, v{60+r}")
        A(f"v_add_f32 v{116+r}, v{116+r}, v{64+r}")
        A(f"v_add_f32 v{116+r}, v{116+r}, v{56+r}")
    A(f"""
    s_cmp_lt_u32 s26, 5
    s_cbranch_scc0 L_mlp_bar
    v_lshlrev_b32 v106, 16, v31
    v_and_b32 v107, 0xffff0000, v31
    s_mov_b32 s46, 0
L_ypoll:
    """)
    if o["sleep_y"]: A(f"s_sleep {o['sleep_y']}")
    for xg in range(8):
        vb = (25, 26, 23)[xg // 3]
        A(f"global_load_dwordx2 v[{32+2*xg}:{33+2*xg}], v{vb}, s[24:25] offset:{(xg%3-1)*2560} sc1")
    A(f"""
    s_add_u32 s46, s46, 1
    s_waitcnt vmcnt(0)
    v_pk_add_f32 v[48:49], v[32:33], v[34:35]
    v_pk_add_f32 v[50:51], v[36:37], v[38:39]
    v_pk_add_f32 v[52:53], v[40:41], v[42:43]
    v_pk_add_f32 v[54:55], v[44:45], v[46:47]
    v_pk_add_f32 v[48:49], v[48:49], v[50:51]
    v_pk_add_f32 v[52:53], v[52:53], v[54:55]
    v_pk_add_f32 v[48:49], v[48:49], v[52:53]
    v_cmp_u_f32 vcc, v48, v49
    s_cbranch_vccz L_ygot
    v_max3_u32 v50, v32, v33, v34
    v_max3_u32 v50, v50, v35, v36
    v_max3_u32 v50, v50, v37, v38
    v_max3_u32 v50, v50, v39, v40
    v_max3_u32 v50, v50, v41, v42
    v_max3_u32 v50, v50, v43, v44
    v_max3_u32 v50, v50, v45, v46
    v_max_u32 v50, v50, v47
    v_cmp_eq_u32 vcc, -1, v50
    s_cbranch_vccz L_ygot
    s_cmp_lt_u32 s46, {SPIN}
    s_cbranch_scc1 L_ypoll
L_ygot:
    """)
    stamp(8)
    A(f"""
    v_cvt_pk_bf16_f32 v50, v48, v49
    v_lshlrev_b32 v48, 16, v50
    v_and_b32 v49, 0xffff0000, v50
    v_pk_add_f32 v[48:49], v[48:49], v[106:107]
    v_cvt_pk_bf16_f32 v50, v48, v49
    ds_write_b32 v24, v50 offset:{L_H}
    """)
    for s in range(4):
        A(f"ds_read_b128 v[{32+4*s}:{35+4*s}], v19 offset:{L_H + 64*s}")
    A(f"""
    v_lshlrev_b32 v48, 16, v50
    v_and_b32 v49, 0xffff0000, v50
    v_add_f32 v52, v48, v49
    v_mul_f32 v53, v48, v48
    v_fmac_f32 v53, v49, v49
    """)
    for r in (1, 2, 4, 8):
        A(f"v_add_f32_dpp v52, v52, v52 row_ror:{r} {DPPF}")
        A(f"v_add_f32_dpp v53, v53, v53 row_ror:{r} {DPPF}")
    A("s_waitcnt lgkmcnt(0)")
    A(f"""
    v_mfma_f32_16x16x32_bf16 v[112:115], v[80:83], v[32:35], 0
    v_add_f32_dpp v52, v52, v52 row_bcast:15 row_mask:0xa bank_mask:0xf
    v_add_f32_dpp v53, v53, v53 row_bcast:15 row_mask:0xa bank_mask:0xf
    v_mfma_f32_16x16x32_bf16 v[112:115], v[84:87], v[36:39], v[112:115]
    v_add_f32_dpp v52, v52, v52 row_bcast:31 row_mask:0xc bank_mask:0xf
    v_add_f32_dpp v53, v53, v53 row_bcast:31 row_mask:0xc bank_mask:0xf
    v_mfma_f32_16x16x32_bf16 v[112:115], v[88:91], v[40:43], v[112:115]
    s_lshl_b32 s34, s26, 3
    v_mov_b32 v54, s34
    v_mfma_f32_16x16x32_bf16 v[112:115], v[92:95], v[44:47], v[112:115]
    s_mov_b32 exec_lo, 0
    s_mov_b32 exec_hi, 0x80000000
    ds_write_b64 v54, v[52:53] offset:{L_ST}
    s_mov_b64 exec, s[48:49]
    ds_write_b128 v21, v[112:115] offset:{L_G}
    s_mov_b64 exec, -1
L_mlp_bar:
    s_waitcnt lgkmcnt(0)
    s_barrier
    ds_read_b128 v[32:35], v11 offset:{L_ST}
    ds_read_b128 v[36:39], v11 offset:{L_ST+16}
    ds_read_b64 v[40:41], v11 offset:{L_ST+32}
    """)
    for w in range(5):
        A(f"ds_read_b128 v[{48+4*w}:{51+4*w}], v22 offset:{L_G + 64*w}")
    A(f"""
    s_mov_b32 s34, 0x3acccccd
    s_waitcnt lgkmcnt(0)
    v_pk_add_f32 v[32:33], v[32:33], v[34:35]
    v_pk_add_f32 v[36:37], v[36:37], v[38:39]
    v_pk_add_f32 v[32:33], v[32:33], v[40:41]
    v_pk_add_f32 v[48:49], v[48:49], v[52:53]
    v_pk_add_f32 v[32:33], v[32:33], v[36:37]
    v_pk_add_f32 v[50:51], v[50:51], v[54:55]
    v_mul_f32 v32, s34, v32
    v_mul_f32 v33, s34, v33
    v_pk_add_f32 v[56:57], v[56:57], v[60:61]
    v_fma_f32 v33, -v32, v32, v33
    v_pk_add_f32 v[58:59], v[58:59], v[62:63]
    v_max_f32 v33, 0, v33
    v_pk_add_f32 v[48:49], v[48:49], v[64:65]
    v_cvt_pk_bf16_f32 v34, v32, v33
    v_pk_add_f32 v[50:51], v[50:51], v[66:67]
    v_and_b32 v33, 0xffff0000, v34
    v_lshlrev_b32 v32, 16, v34
    v_add_f32 v33, 0x3727c5ac, v33
    v_pk_add_f32 v[48:49], v[48:49], v[56:57]
    v_cvt_pk_bf16_f32 v33, v33, v33
    v_pk_add_f32 v[50:51], v[50:51], v[58:59]
    v_lshlrev_b32 v33, 16, v33
    v_sqrt_f32 v33, v33
    v_fma_f32 v48, -v32, v116, v48
    v_fma_f32 v49, -v32, v117, v49
    v_cvt_pk_bf16_f32 v33, v33, v33
    v_fma_f32 v50, -v32, v118, v50
    v_lshlrev_b32 v33, 16, v33
    v_fma_f32 v51, -v32, v119, v51
    v_rcp_f32 v33, v33
    v_max_f32 v48, 0, v48
    v_max_f32 v49, 0, v49
    v_max_f32 v50, 0, v50
    v_max_f32 v51, 0, v51
    v_mul_f32 v48, v48, v33
    v_mul_f32 v49, v49, v33
    v_mul_f32 v50, v50, v33
    v_mul_f32 v51, v51, v33
    v_cvt_pk_bf16_f32 v52, v48, v49
    v_cvt_pk_bf16_f32 v53, v50, v51
    """)
    for k in range(5):
        A(f"v_cndmask_b32 v{54+2*k}, 0, v52, s[{50+2*k}:{51+2*k}]")
        A(f"v_cndmask_b32 v{55+2*k}, 0, v53, s[{50+2*k}:{51+2*k}]")
    for k in range(5):
        c = "0" if k == 0 else "v[68:71]"
        A(f"v_mfma_f32_16x16x16_bf16 v[68:71], v[{96+2*k}:{97+2*k}], v[{54+2*k}:{55+2*k}], {c}")
    A(f"""
    s_mov_b32 exec_lo, 0x001f001f
    s_mov_b32 exec_hi, 0x001f001f
    global_store_dwordx4 v20, v[68:71], s[24:25] sc1
    s_mov_b64 exec, -1
    """)
    stamp(9)
    A(f"""
    s_cmp_lg_u32 s26, 0
    s_cbranch_scc1 L_fin
    s_cmp_lt_u32 s31, 80
    s_cbranch_scc0 L_fin
    v_lshrrev_b32 v24, 2, v0
    v_mul_u32_u24 v24, 2560, v24
    v_and_b32 v25, 3, v0
    v_lshl_add_u32 v24, v25, 3, v24
    s_lshl_b32 s34, s31, 5
    s_add_u32 s34, s34, {WS_ZP}
    v_add_u32 v24, s34, v24
    """)
    for u in range(1, 6):
        A(f"v_add_u32 v{72+u}, {16*2560*u}, v24")
    A(f"""
    s_lshl_b32 s34, s31, 4
    v_lshl_add_u32 v25, v25, 2, s34
    ds_read_b32 v26, v25 offset:{L_H}
    s_mov_b32 s46, 0
L_zpoll:
    """)
    if o["sleep_z"]: A(f"s_sleep {o['sleep_z']}")
    for u in range(6):
        va = "v24" if u == 0 else f"v{72+u}"
        A(f"global_load_dwordx2 v[{32+2*u}:{33+2*u}], {va}, s[24:25] sc1")
    A(f"""
    s_add_u32 s46, s46, 1
    s_waitcnt vmcnt(0)
    v_pk_add_f32 v[48:49], v[32:33], v[34:35]
    v_pk_add_f32 v[50:51], v[36:37], v[38:39]
    v_pk_add_f32 v[52:53], v[40:41], v[42:43]
    v_pk_add_f32 v[48:49], v[48:49], v[50:51]
    v_pk_add_f32 v[48:49], v[48:49], v[52:53]
    v_cmp_u_f32 vcc, v48, v49
    s_cbranch_vccz L_zgot
    v_max3_u32 v50, v32, v33, v34
    v_max3_u32 v50, v50, v35, v36
    v_max3_u32 v50, v50, v37, v38
    v_max3_u32 v50, v50, v39, v40
    v_max3_u32 v50, v50, v41, v42
    v_max_u32 v50, v50, v43
    v_cmp_eq_u32 vcc, -1, v50
    s_cbranch_vccz L_zgot
    s_cmp_lt_u32 s46, {SPIN}
    s_cbranch_scc1 L_zpoll
L_zgot:
    """)
    stamp(10)
    A(f"""
    v_add_f32_dpp v48, v48, v48 row_ror:4 {DPPF}
    v_add_f32_dpp v49, v49, v49 row_ror:4 {DPPF}
    v_add_f32_dpp v48, v48, v48 row_ror:8 {DPPF}
    v_add_f32_dpp v49, v49, v49 row_ror:8 {DPPF}
    v_mov_b32 v50, v48
    v_mov_b32 v51, v49
    v_permlane16_swap_b32 v48, v50
    v_permlane16_swap_b32 v49, v51
    v_pk_add_f32 v[48:49], v[48:49], v[50:51]
    v_mov_b32 v50, v48
    v_mov_b32 v51, v49
    v_permlane32_swap_b32 v48, v50
    v_permlane32_swap_b32 v49, v51
    v_pk_add_f32 v[48:49], v[48:49], v[50:51]
    v_cvt_pk_bf16_f32 v50, v48, v49
    s_waitcnt lgkmcnt(0)
    v_lshlrev_b32 v48, 16, v50
    v_and_b32 v49, 0xffff0000, v50
    v_lshlrev_b32 v52, 16, v26
    v_and_b32 v53, 0xffff0000, v26
    v_pk_add_f32 v[48:49], v[48:49], v[52:53]
    v_cvt_pk_bf16_f32 v50, v48, v49
    s_mov_b64 exec, 15
    global_store_dword v25, v50, s[20:21]
    s_cmp_lg_u32 s31, 0
    s_cbranch_scc1 L_fin
    v_mov_b32 v51, s36
    s_mov_b64 exec, 1
    global_store_dword v11, v51, s[24:25] sc1
L_fin:
    """)
    if stamps:
        stamp(11)
        A("""
        s_mov_b64 exec, 1
        s_waitcnt lgkmcnt(0)
        s_lshl_b32 s34, s2, 3
        s_add_u32 s34, s34, s26
        s_lshl_b32 s34, s34, 6
        s_add_u32 s34, s34, 0x40000000
        v_mov_b32 v1, s34
        """)
        for k in range(16): A(f"v_mov_b32 v{32+k}, s{60+2*k}")
        for k in range(4): A(f"global_store_dwordx4 v1, v[{32+4*k}:{35+4*k}], s[24:25] offset:{16*k}")
    A("""
L_end:
    s_endpgm
    """)
    A(f"""
L_pub_slow:
    s_mov_b64 exec, s[48:49]
    global_store_dword v6, v19, s[24:25] sc1
    s_mov_b64 exec, s[50:51]
    global_store_dwordx2 v7, v[16:17], s[24:25] offset:384 sc1
    s_branch L_pub_done
    """)
    A(f"""
L_control:
    v_lshlrev_b32 v24, 2, v0
    v_mov_b32 v11, 0
    ds_write_b32 v24, v11
    s_waitcnt lgkmcnt(0)
    s_barrier
    s_setprio 3
    """)
    for u in range(5): A(f"global_load_dword v{236+u}, v24, s[4:5] offset:{256*u}")
    A(f"""
    global_load_dword v241, v11, s[24:25] sc1
    v_lshrrev_b32 v25, 3, v2
    v_lshl_add_u32 v25, v3, 1, v25
    s_mul_i32 s34, s30, 80
    v_add_u32 v25, s34, v25
    v_mul_u32_u24 v26, 12288, v25
    v_and_b32 v27, 7, v0
    v_lshl_add_u32 v26, v27, 4, v26
    s_mul_i32 s34, s29, 384
    v_add_u32 v26, s34, v26
    s_lshl_b32 s47, s29, 3
    s_add_u32 s47, s47, s30
    s_lshl_b32 s34, s47, 9
    s_add_u32 s34, s34, {WS_OP}
    v_lshl_add_u32 v28, v0, 3, s34
    v_mov_b32 v20, -1
    v_mov_b32 v21, -1
    v_mov_b32 v22, -1
    v_mov_b32 v23, -1
    global_store_dwordx2 v28, v[20:21], s[24:25] sc1
    s_cmp_lt_u32 s28, 20
    s_cbranch_scc0 L_rst_mlp
    s_mul_i32 s34, s27, 2560
    s_lshl_b32 s35, s31, 7
    s_add_u32 s34, s34, s35
    s_add_u32 s34, s34, {WS_YP}
    v_and_b32 v28, 31, v0
    v_lshl_add_u32 v28, v28, 2, s34
    global_store_dword v28, v20, s[24:25] sc1
    s_branch L_rst_done
L_rst_mlp:
    s_mul_i32 s34, s31, 2560
    s_add_u32 s34, s34, {WS_ZP}
    v_lshl_add_u32 v28, v0, 4, s34
    v_lshl_add_u32 v29, v0, 3, s34
    global_store_dwordx4 v28, v[20:23], s[24:25] sc1
    global_store_dwordx4 v28, v[20:23], s[24:25] offset:1024 sc1
    global_store_dwordx2 v29, v[20:21], s[24:25] offset:2048 sc1
L_rst_done:
    s_mov_b32 s32, s10
    s_mov_b32 s33, s11
    """)
    for a in range(10):
        for m in range(3):
            d = 32 + (a * 3 + m) * 4
            A(f"global_load_dwordx4 v[{d}:{d+3}], v26, s[32:33] offset:{128*m} nt")
        if a < 9:
            A("s_add_u32 s32, s32, 98304")
            A("s_addc_u32 s33, s33, 0")
    A("v_lshlrev_b32 v30, 2, v25")
    masks()
    A("s_mov_b32 s35, 0xffff0000")
    A("s_waitcnt vmcnt(30)")
    for u in range(5):
        A(f"v_lshlrev_b32 v{242+2*u}, 16, v{236+u}")
        A(f"v_and_b32 v{243+2*u}, s35, v{236+u}")
    A(f"""
    v_readfirstlane_b32 s36, v241
    v_add_f32 v24, v242, v243
    v_add_f32 v25, v244, v245
    v_add_f32 v26, v246, v247
    v_add_f32 v27, v248, v249
    v_add_f32 v28, v250, v251
    v_add_f32 v24, v24, v25
    v_add_f32 v26, v26, v27
    v_add_f32 v24, v24, v28
    v_add_f32 v24, v24, v26
    s_mul_i32 s36, s36, 0x9e3779b1
    s_add_u32 s36, s36, 0x7f4a7c15
    """)
    wave_red("add", "v24", "s34")
    A(f"""
    v_mov_b32 v25, s34
    v_mul_f32 v25, 0x3acccccd, v25
    v_sub_f32 v26, v242, v25
    v_mul_f32 v24, v26, v26
    """)
    for k in range(1, 10):
        A(f"v_sub_f32 v26, v{242+k}, v25")
        A(f"v_fmac_f32 v24, v26, v26")
    wave_red("add", "v24", "s34")
    A(f"""
    v_mov_b32 v26, s34
    v_mul_f32 v26, 0x3acccccd, v26
    v_cvt_pk_bf16_f32 v27, v25, v26
    v_lshlrev_b32 v25, 16, v27
    v_and_b32 v26, s35, v27
    v_add_f32 v26, 0x3727c5ac, v26
    v_cvt_pk_bf16_f32 v26, v26, v26
    v_lshlrev_b32 v26, 16, v26
    v_sqrt_f32 v26, v26
    v_cvt_pk_bf16_f32 v26, v26, v26
    v_lshlrev_b32 v26, 16, v26
    v_rcp_f32 v27, v26
    v_lshlrev_b32 v31, 3, v0
    """)
    for u in range(5):
        lo, hi = 242 + 2 * u, 243 + 2 * u
        A(f"""
        v_sub_f32 v{lo}, v{lo}, v25
        v_sub_f32 v{hi}, v{hi}, v25
        v_cvt_pk_bf16_f32 v28, v{lo}, v{hi}
        v_lshlrev_b32 v{lo}, 16, v28
        v_and_b32 v{hi}, s35, v28
        v_mul_f32 v28, v{lo}, v27
        v_mul_f32 v29, v{hi}, v27
        v_fma_f32 v{lo}, -v28, v26, v{lo}
        v_fma_f32 v{hi}, -v29, v26, v{hi}
        v_fmac_f32 v28, v{lo}, v27
        v_fmac_f32 v29, v{hi}, v27
        v_cvt_pk_bf16_f32 v{lo}, v28, v28
        v_cvt_pk_bf16_f32 v{hi}, v29, v29
        ds_write_b64 v31, v[{lo}:{hi}] offset:{L_XN + 512*u}
        """)
    for a in range(10):
        A(f"ds_read_b32 v{236+a}, v30 offset:{L_XN + 32*a}")
    A(f"""
    v_lshrrev_b32 v24, 1, v3
    v_mul_u32_u24 v24, 768, v24
    v_and_b32 v25, 1, v3
    v_lshl_add_u32 v24, v25, 7, v24
    v_and_b32 v25, 7, v0
    v_lshl_add_u32 v24, v25, 4, v24
    v_lshrrev_b32 v26, 5, v0
    v_lshlrev_b32 v26, 7, v26
    v_lshl_add_u32 v26, v25, 4, v26
    v_bfe_u32 v25, v0, 3, 2
    v_lshl_add_u32 v26, v25, 2, v26
    v_add_u32 v26, {L_QT}, v26
    s_waitcnt vmcnt(0) lgkmcnt(0)
    """)
    stamp(13)
    for a in range(10):
        b = 16 + 4 * (a & 1)
        for r in range(4): A(f"v_and_b32 v{b+r}, v{12+r}, v{236+a}")
        for m in range(3):
            k = 32 + (a * 3 + m) * 4
            d = 224 + 4 * m
            c = "0" if a == 0 else f"v[{d}:{d+3}]"
            A(f"v_mfma_f32_16x16x32_bf16 v[{d}:{d+3}], v[{k}:{k+3}], v[{b}:{b+3}], {c}")
    A("s_mov_b64 exec, s[42:43]")
    for m in range(3):
        A(f"ds_write_b128 v24, v[{224+4*m}:{227+4*m}] offset:{L_QT + 256*m}")
    A("s_mov_b64 exec, -1")
    for u in range(3):
        A(f"ds_read2st64_b32 v[{16+2*u}:{17+2*u}], v26 offset0:{u} offset1:{u+3}")
    A(f"""
    s_getreg_b32 s53, hwreg(HW_REG_XCC_ID, 0, 3)
    s_andn2_b32 s54, s36, 7
    s_or_b32 s54, s54, s53
    s_lshl_b32 s34, s47, 10
    s_add_u32 s34, s34, {WS_QP}
    v_lshl_add_u32 v24, v0, 4, s34
    s_lshl_b32 s34, s29, 13
    s_add_u32 s34, s34, {WS_QP + 4096}
    v_lshl_add_u32 v25, v0, 4, s34
    s_waitcnt lgkmcnt(0)
    v_add_f32 v16, v16, v17
    v_add_f32 v17, v18, v19
    v_add_f32 v18, v20, v21
    v_mov_b32 v19, s54
    global_store_dwordx4 v24, v[16:19], s[24:25] sc1
    """)
    stamp(14)
    if o["codepf"]:
        A("""
        s_getpc_b64 s[50:51]
L_pc:
        s_sub_u32 s50, s50, L_pc-L_data
        s_subb_u32 s51, s51, 0
        v_lshlrev_b32 v20, 7, v0
        v_add_u32 v21, 8192, v20
        global_load_dword v22, v20, s[50:51]
        global_load_dword v23, v21, s[50:51]
        """)
    A("""
    s_mov_b32 s46, 0
L_qpoll:
    """)
    for k in range(8):
        A(f"global_load_dwordx4 v[{32+4*k}:{35+4*k}], v25, s[24:25] offset:{k*1024-4096} sc1")
    A(f"""
    s_add_u32 s46, s46, 1
    s_waitcnt vmcnt(0)
    v_min3_u32 v20, v35, v39, v43
    v_max3_u32 v21, v35, v39, v43
    v_min3_u32 v20, v20, v47, v51
    v_max3_u32 v21, v21, v47, v51
    v_min3_u32 v20, v20, v55, v59
    v_max3_u32 v21, v21, v55, v59
    v_min_u32 v20, v20, v63
    v_max_u32 v21, v21, v63
    v_xor_b32 v20, s36, v20
    v_xor_b32 v21, s36, v21
    v_or_b32 v20, v20, v21
    v_cmp_lt_u32 vcc, 7, v20
    s_cbranch_vccz L_qall
    s_cmp_lt_u32 s46, {SPIN}
    s_cbranch_scc1 L_qpoll
L_qall:
    """)
    for u in range(3):
        r = [32 + 4 * c + u for c in range(8)]
        A(f"""
        v_add_f32 v16, v{r[0]}, v{r[1]}
        v_add_f32 v17, v{r[2]}, v{r[3]}
        v_add_f32 v18, v{r[4]}, v{r[5]}
        v_add_f32 v19, v{r[6]}, v{r[7]}
        v_add_f32 v16, v16, v17
        v_add_f32 v18, v18, v19
        v_add_f32 v16, v16, v18
        v_cvt_pk_bf16_f32 v{20+u}, v16, v16
        """)
    A(f"""
    v_lshlrev_b32 v24, 1, v0
    ds_write_b16 v24, v20 offset:{L_Q}
    ds_write_b16 v24, v21 offset:{L_Q+128}
    ds_write_b16 v24, v22 offset:{L_Q+256}
    v_mov_b32 v25, 1
    ds_write_b32 v11, v25 offset:{L_QRDY}
    s_setprio 0
    """)
    stamp(15)
    data_path(o["N0"], o["N0"], "c", True)
    A(f"""
    v_lshlrev_b32 v25, 10, v0
    v_add_u32 v25, {WS_QP + 12}, v25
    v_add_u32 v26, {64*1024}, v25
    v_add_u32 v27, {128*1024}, v25
    v_add_u32 v28, {192*1024}, v25
    v_and_b32 v29, 31, v0
    v_lshlrev_b32 v29, 10, v29
    s_lshl_b32 s34, s27, 15
    s_add_u32 s34, s34, {WS_QP + 12}
    v_add_u32 v29, s34, v29
    s_mov_b32 s46, 0
L_fpoll:
    global_load_dword v32, v25, s[24:25] sc1
    global_load_dword v33, v26, s[24:25] sc1
    global_load_dword v34, v27, s[24:25] sc1
    global_load_dword v35, v28, s[24:25] sc1
    global_load_dword v36, v29, s[24:25] sc1
    s_add_u32 s46, s46, 1
    s_waitcnt vmcnt(0)
    v_min3_u32 v20, v32, v33, v34
    v_max3_u32 v21, v32, v33, v34
    v_min3_u32 v20, v20, v35, v36
    v_max3_u32 v21, v21, v35, v36
    v_xor_b32 v20, s36, v20
    v_xor_b32 v21, s36, v21
    v_or_b32 v20, v20, v21
    v_cmp_lt_u32 vcc, 7, v20
    s_cbranch_vccz L_fall
    s_cmp_lt_u32 s46, {SPIN}
    s_cbranch_scc1 L_fpoll
L_fall:
    v_cmp_ne_u32 vcc, s54, v36
    s_cmp_eq_u64 vcc, 0
    s_cselect_b32 s37, {2 if o['fast'] else 1}, 1
    v_mov_b32 v25, s37
    ds_write_b32 v11, v25 offset:{L_OK}
    v_lshrrev_b32 v24, 2, v0
    v_and_b32 v25, 3, v0
    v_mul_u32_u24 v24, 1280, v24
    s_cmp_lt_u32 s28, 20
    s_cbranch_scc0 L_dma_mlp
    v_lshrrev_b32 v26, 4, v0
    v_and_b32 v26, 2, v26
    v_xor_b32 v25, v25, v26
    v_lshl_add_u32 v24, v25, 4, v24
    s_mul_i32 s35, s27, {768*1280}
    s_lshl_b32 s47, s31, 6
    s_add_u32 s35, s35, s47
    s_add_u32 s32, s12, s35
    s_addc_u32 s33, s13, 0
    s_mov_b32 s47, 20480
    s_mov_b32 s48, 48
    s_mov_b32 s55, 0
    s_branch L_dma_wait
L_dma_mlp:
    v_lshrrev_b32 v26, 3, v0
    v_and_b32 v26, 2, v26
    v_xor_b32 v25, v25, v26
    v_lshl_add_u32 v30, v25, 4, v24
    v_lshrrev_b32 v24, 1, v0
    v_and_b32 v25, 0x13, v24
    v_and_b32 v26, 4, v24
    v_lshl_add_u32 v25, v26, 1, v25
    v_and_b32 v26, 8, v24
    v_lshrrev_b32 v26, 1, v26
    v_add_u32 v24, v25, v26
    v_mul_u32_u24 v24, 3072, v24
    v_and_b32 v25, 1, v0
    v_lshl_add_u32 v24, v25, 4, v24
    s_lshl_b32 s35, s31, 5
    s_add_u32 s32, s16, s35
    s_addc_u32 s33, s17, 0
    s_mov_b32 s47, 98304
    s_mov_b32 s48, 20
    s_mov_b32 s55, 1
L_dma_wait:
    s_mov_b32 s49, {L_W}
    s_mov_b32 s46, 0
L_ispin:
    ds_read_b32 v27, v11 offset:{L_ISS if o['dma'] == 'issued' else L_PUB}
    s_add_u32 s46, s46, 1
    s_waitcnt lgkmcnt(0)
    v_readfirstlane_b32 s35, v27
    s_cmp_ge_u32 s35, {o.get('ISSN', 7) if o['dma'] == 'issued' else 3}
    s_cbranch_scc1 L_dma_go
    s_sleep 1
    s_cmp_lt_u32 s46, {SPIN*8}
    s_cbranch_scc1 L_ispin
L_dma_go:
    """)
    stamp(12)
    A(f"""
L_dma_loop:
    s_mov_b32 m0, s49
    s_add_u32 s49, s49, 1024
    s_waitcnt vmcnt({o['ND']-1})
    global_load_lds_dwordx4 v24, s[32:33] nt
    s_add_u32 s32, s32, s47
    s_addc_u32 s33, s33, 0
    s_sub_u32 s48, s48, 1
    s_cmp_lg_u32 s48, 0
    s_cbranch_scc1 L_dma_loop
    s_cmp_eq_u32 s55, 0
    s_cbranch_scc1 L_role
    s_mov_b32 s55, 0
    v_mov_b32 v24, v30
    s_mul_i32 s35, s31, {16*1280}
    s_add_u32 s32, s18, s35
    s_addc_u32 s33, s19, 0
    s_mov_b32 s47, 64
    s_mov_b32 s48, 20
    s_branch L_dma_loop
    """)
    A(".fill 1400, 4, 0xbf800000" if o["codepf"] else "")
    A(footer())
    txt = A.padded()
    open(name, "w").write(txt)
    print(name, "pads:", A.npad, "lines:", len(txt.splitlines()))

if __name__ == "__main__":
    gen("k2.s")
    gen("k2_st.s", stamps=True)
    gen("k2_pub_st.s", stamps=True, opts=dict(dma="pub", ND=48))
    gen("k2_slow_st.s", stamps=True, opts=dict(fast=False))
```
